```python
import torch

def _softmax(x, axis=-1):
    return torch.softmax(x, dim=axis)
def _gelu(x):
    return torch.nn.functional.gelu(x, approximate="tanh")
def _silu(x):
    return torch.nn.functional.silu(x)
def _sigmoid(x):
    return torch.sigmoid(x)
def _layernorm(x, axis=-1, eps=1e-5):
    m = x.mean(dim=axis, keepdim=True)
    v = x.var(dim=axis, keepdim=True, unbiased=False)
    return (x - m) / torch.sqrt(v + eps)
def _scatter_add(tgt, idx, src, axis=0):
    return tgt.clone().index_add_(axis, idx, src)
def _segment_sum(src, seg, n):
    out = torch.zeros((n,) + src.shape[1:], dtype=src.dtype)
    return out.index_add_(0, seg, src)
def _pad(x, pw):
    flat = tuple(v for pair in reversed(pw) for v in pair)
    return torch.nn.functional.pad(x, flat)

kernel_name = 'recurrent_scan__sliding_block_cached__glu_gated_reglu__decode'

def setup_inputs():

    _w = (lambda a: (lambda t: t.to(torch.bfloat16) if t.is_floating_point() else t)(torch.as_tensor(a)))
    def _A_setup():
        B, Sq, D = 1, 1, 448
        Hq, Hkv, Sk, Dh = 16, 8, 65536, 256
        assert Hq % Hkv == 0, (Hq, Hkv)
        return {
            "x": _w((lambda *s: torch.randn(*s, dtype=torch.bfloat16) * 0.2)(B, Sq, D)),
            "k_cache": _w((lambda *s: torch.randn(*s, dtype=torch.bfloat16) * 1.6)(B, Hkv, Sk, Dh)),
            "v_cache": _w((lambda *s: torch.randn(*s, dtype=torch.bfloat16) * 1.6)(B, Hkv, Sk, Dh)),
            "wq": _w((lambda *s: torch.randn(*s, dtype=torch.bfloat16) * 1.6)(D, Hq * Dh) * (D ** -0.5)),
            "wo": _w((lambda *s: torch.randn(*s, dtype=torch.bfloat16) * 1.6)(Hq * Dh, D) * ((Hq * Dh) ** -0.5)),
        }
    _A_in = _A_setup()

    def _B_setup():
        B, S, D, F = 1, 1, 448, 1792
        return {
            "x": _w((lambda *s: torch.randn(*s, dtype=torch.bfloat16) * 0.2)(B, S, D)),
            "W_gate": _w((lambda *s: torch.randn(*s, dtype=torch.bfloat16) * 0.8)(D, F) * (2.0 / D) ** 0.5),
            "W_up": _w((lambda *s: torch.randn(*s, dtype=torch.bfloat16) * 0.8)(D, F) * (2.0 / D) ** 0.5),
            "W_down": _w((lambda *s: torch.randn(*s, dtype=torch.bfloat16) * 0.8)(F, D) * (1.0 / F) ** 0.5),
        }
    _B_in = _B_setup()

    return {
        "A_x": _A_in["x"],
        "A_k_cache": _A_in["k_cache"],
        "A_v_cache": _A_in["v_cache"],
        "A_wq": _A_in["wq"],
        "A_wo": _A_in["wo"],
        "B_x": _B_in["x"],
        "B_W_gate": _B_in["W_gate"],
        "B_W_up": _B_in["W_up"],
        "B_W_down": _B_in["W_down"],
    }

def reference(A_x, A_k_cache, A_v_cache, A_wq, A_wo, B_x, B_W_gate, B_W_up, B_W_down):
    def _A_ref(x, k_cache, v_cache, wq, wo):
        B, Sq, D = x.shape
        Hq, Dh = 16, 256
        Hkv, Sk = k_cache.shape[1], k_cache.shape[2]
        W = min(4096, max(256, Sk // 4))
        rep = Hq // Hkv
        q = (lambda x, *d: x.permute(*d))((x @ wq).reshape(B, Sq, Hq, Dh), 0, 2, 1, 3)
        k = (lambda x, n, axis: torch.repeat_interleave(x, n, dim=axis))(k_cache[:, :, Sk - W:, :], rep, axis=1)
        v = (lambda x, n, axis: torch.repeat_interleave(x, n, dim=axis))(v_cache[:, :, Sk - W:, :], rep, axis=1)
        scores = torch.einsum("bhqd,bhkd->bhqk", q, k) * (Dh ** -0.5)
        p = _softmax(scores, axis=-1)
        o = torch.einsum("bhqk,bhkd->bhqd", p, v)
        return (lambda x, *d: x.permute(*d))(o, 0, 2, 1, 3).reshape(B, Sq, Hq * Dh) @ wo

    def _B_ref(x, W_gate, W_up, W_down):
        gate = torch.einsum("bsd,df->bsf", x, W_gate)
        up = torch.einsum("bsd,df->bsf", x, W_up)
        gate = gate * (lambda x, dt: x.to(dt))(gate > 0, gate.dtype)
        h = gate * up
        return torch.einsum("bsf,fd->bsd", h, W_down)

    x = A_x
    xn = _layernorm(x, axis=-1)
    s = _A_ref(xn, A_k_cache, A_v_cache, A_wq, A_wo)
    g = _silu(_B_ref(xn, B_W_gate, B_W_up, B_W_down))
    return x + s * g
```

```python
import re
KN = "recurrent_scan__sliding_block_cached__glu_gated_reglu__decode_kernel"

TRANS = ("v_exp_f32", "v_log_f32", "v_rcp_f32", "v_rsq_f32", "v_sqrt_f32", "v_sin_f32", "v_cos_f32")

def regs_of(tok):
    tok = tok.strip()
    tok = tok.lstrip("-")
    if tok.startswith("abs(") : tok = tok[4:-1]
    tok = tok.strip("|")
    m = re.fullmatch(r"([vsa])\[(\d+):(\d+)\]", tok)
    if m: return {m.group(1) + str(i) for i in range(int(m.group(2)), int(m.group(3)) + 1)}
    m = re.fullmatch(r"([vsa])(\d+)", tok)
    if m: return {tok}
    if tok in ("vcc",): return {"vcc"}
    if tok in ("exec",): return {"exec"}
    if tok in ("vcc_lo", "vcc_hi"): return {"vcc"}
    if tok in ("exec_lo", "exec_hi"): return {"exec"}
    if tok == "m0": return {"m0"}
    return set()

class Ins:
    def __init__(s, text):
        s.text = text
        t = text.split(";")[0].strip()
        s.label = t.endswith(":")
        s.directive = t.startswith(".")
        parts = t.split(None, 1)
        s.op = parts[0] if parts else ""
        rest = parts[1] if len(parts) > 1 else ""
        toks = []
        depth = 0; cur = ""
        for ch in rest:
            if ch in "[(": depth += 1
            if ch in "])": depth -= 1
            if ch == "," and depth == 0: toks.append(cur); cur = ""
            else: cur += ch
        if cur.strip(): toks.append(cur)
        if toks:
            lt = toks[-1].strip().split()
            s.mods = " ".join(lt[1:]); toks[-1] = lt[0]
        else: s.mods = ""
        s.toks = [x.strip() for x in toks]
        op = s.op
        s.mfma = op.startswith("v_mfma")
        s.valu = op.startswith("v_") and not s.mfma
        s.salu = op.startswith("s_") and not op.startswith(("s_load", "s_memrealtime", "s_memtime", "s_buffer"))
        s.vmem = op.startswith(("global_", "buffer_"))
        s.ds = op.startswith("ds_")
        s.dpp = "_dpp" in op
        s.perml = op.startswith("v_permlane")
        s.trans = any(op.startswith(x) for x in TRANS)
        s.dot = op.startswith("v_dot")
        s.rdlane = op.startswith(("v_readlane", "v_readfirstlane"))
        s.sdwa = "_sdwa" in op
        R = [regs_of(x) for x in s.toks]
        s.w = set(); s.r = set()
        if s.label or s.directive or not op: return
        isstore = ("store" in op) or (s.ds and ("write" in op or op.startswith(("ds_add_f32", "ds_max", "ds_add_u32")) and "rtn" not in op)) or ("atomic" in op and "sc0" not in s.mods)
        if op.startswith(("s_cmp", "s_cbranch", "s_branch", "s_waitcnt", "s_nop", "s_barrier", "s_sleep", "s_endpgm", "s_setprio", "s_bitcmp")) or isstore or "_lds_" in op or " lds" in (" " + s.mods):
            for x in R: s.r |= x
        else:
            if R: s.w |= R[0]
            start = 1
            if op.startswith(("v_add_co", "v_sub_co", "v_addc_co", "v_div_scale")):
                s.w |= R[1]; start = 2
            for x in R[start:]: s.r |= x
            if s.perml: s.w |= R[1]; s.r |= R[0]
            if op.startswith(("v_fmac", "v_dot2c", "v_writelane")) or s.dpp or s.sdwa: s.r |= R[0]
            if op.startswith("v_cndmask") and len(s.toks) == 3: s.r.add("vcc")
            if "saveexec" in op: s.w.add("exec"); s.r.add("exec")
        s.isstore = isstore
        s.wide_store = isstore and s.vmem and ("x4" in op or "x3" in op)
        if s.mfma:
            s.passes = 8 if "32x32" in op else 4
            s.srcc = R[3]; s.srcab = R[1] | R[2]
    def states(s):
        if s.label or s.directive or not s.op: return 0
        if s.op == "s_nop": return int(s.toks[0], 0) + 1
        return 1

def need(p, c):
    n = 0
    pv = {x for x in p.w if x[0] in "va"}
    ps = {x for x in p.w if x[0] == "s" or x in ("vcc",)}
    if p.valu:
        if c.mfma and pv & c.r: n = max(n, 2)
        if c.dpp and pv & c.r: n = max(n, 2)
        if c.perml and pv & c.r: n = max(n, 2)
        if c.rdlane and pv & c.r: n = max(n, 1)
        if p.trans and c.valu and pv & c.r: n = max(n, 1)
        if p.trans and (c.vmem or c.ds) and pv & c.r: n = max(n, 1)
        if (p.sdwa or "op_sel" in p.mods) and c.valu and pv & (c.r | c.w): n = max(n, 1)
        if ps and c.valu and ps & c.r: n = max(n, 4 if c.rdlane or c.op.startswith("v_writelane") else 2)
        if ps and c.vmem and ps & c.r: n = max(n, 5)
        if "exec" in p.w:
            if c.dpp: n = max(n, 5)
            if c.mfma or c.perml or c.rdlane: n = max(n, 4)
        if p.dot:
            if pv & (c.r | c.w) and (c.valu or c.mfma or c.vmem or c.ds):
                same = c.op.replace("_dpp", "").replace("_e32", "") == p.op.replace("_dpp", "").replace("_e32", "")
                srcs = set()
                for t in c.toks[1:3]: srcs |= regs_of(t)
                if same and not (pv & srcs): pass
                else: n = max(n, 3)
    if p.mfma:
        big = {4: 8, 8: 12}[p.passes]
        if c.mfma:
            if pv & c.srcab: n = max(n, big)
            if pv & c.srcc and c.srcc != pv: n = max(n, big - 2)
        elif (c.valu or c.vmem or c.ds) and pv & (c.r | c.w): n = max(n, big)
        if c.valu and p.srcc & c.w: n = max(n, p.passes - 1)
    if p.op and getattr(p, "wide_store", False) and c.valu:
        data = regs_of(p.toks[1]) if p.op.startswith("global") else regs_of(p.toks[0])
        if data & c.w: n = max(n, 2)
    if p.salu and "m0" in p.w and (("_lds_" in c.op) or (" lds" in " " + c.mods)): n = max(n, 1)
    return n

def fix_hazards(lines):
    out = []
    for t in lines:
        c = Ins(t)
        if c.label or c.directive or not c.op:
            out.append(c); continue
        dist = 0; req = 0
        for p in reversed(out):
            if dist >= 20: break
            if p.op in ("s_branch", "s_endpgm"): break
            if not (p.label or p.directive):
                req = max(req, need(p, c) - dist)
            dist += p.states()
        while req > 0:
            k = min(req, 16)
            out.append(Ins(f"s_nop {k-1}")); req -= k
        out.append(c)
    return [x.text for x in out]

def finish(lines, grid, block, lds, nv, ns=96, comment=""):
    lines = fix_hazards(lines)
    acc = (nv + 3) // 4 * 4
    body = "\n".join(x if x.rstrip().endswith(":") else "    " + x for x in lines)
    return f"""{comment}; @launch grid=({grid},1,1) block=({block},1,1) lds={lds}
.amdgcn_target "amdgcn-amd-amdhsa--gfx950"
.text
.p2align 12
.globl {KN}
.p2align 8
.type {KN},@function
{KN}:
{body}
.section .rodata,"a"
.p2align 6
.amdhsa_kernel {KN}
  .amdhsa_next_free_vgpr {nv}
  .amdhsa_next_free_sgpr {ns}
  .amdhsa_accum_offset {acc}
  .amdhsa_group_segment_fixed_size 0
  .amdhsa_kernarg_size 96
  .amdhsa_user_sgpr_count 2
  .amdhsa_user_sgpr_kernarg_segment_ptr 1
  .amdhsa_system_sgpr_workgroup_id_x 1
.end_amdhsa_kernel
"""
```

```python
import sys, struct
from asmlib import finish

def f2u(x): return struct.unpack("<I", struct.pack("<f", x))[0]

QBOX, FBOX, OBOX, MLBOX, SBOX = 0x1000, 0x20000, 0x40000, 0xD0000, 0x100000
OSTR, SSTR = 2176, 3712
GL, QL, MX, LS, OL, LDSZ = 0, 4096, 5120, 5184, 8192, 24576
SPIN = 0x8000
DPPM = "row_mask:0xf bank_mask:0xf"
NS = 16

def gen(stamps=False, k_first=4, k_second=4, bp2=True):
    L = []; e = L.append
    def stamp(i):
        if stamps: e(f"s_memrealtime s[{68+2*i}:{69+2*i}]")
    def dump_stamps(pairs):
        if not stamps: return
        e("s_waitcnt lgkmcnt(0)")
        e(f"s_mul_i32 s11, s2, {NS*8}")
        e("s_add_u32 s11, s11, 0x10000000")
        e("s_add_u32 s46, s38, s11"); e("s_addc_u32 s47, s39, 0")
        e("s_mov_b64 exec, 1")
        e("v_mov_b32 v1, 0")
        for i, slot in pairs:
            e(f"v_mov_b32 v2, s{68+2*i}"); e(f"v_mov_b32 v3, s{69+2*i}")
            e(f"global_store_dwordx2 v1, v[2:3], s[46:47] offset:{8*slot}")
            e("s_nop 1")
    def xred(op, x, t, rors, p16=True, p32=True):
        for r in rors:
            for v in x: e(f"{op}_dpp v{v}, v{v}, v{v} row_ror:{r} {DPPM}")
        for on, nm in ((p16, "v_permlane16_swap_b32"), (p32, "v_permlane32_swap_b32")):
            if not on: continue
            for v, u in zip(x, t): e(f"v_mov_b32 v{u}, v{v}")
            for v, u in zip(x, t): e(f"{nm} v{v}, v{u}")
            for v, u in zip(x, t): e(f"{op} v{v}, v{v}, v{u}")
    def tagcheck(regs, tmp, vt):
        ts = []
        for i in range(0, len(regs), 2):
            e(f"v_bitop3_b32 v{tmp+i//2}, v{regs[i]}, v{regs[i+1]}, v{vt} bitop3:0x7e"); ts.append(tmp + i//2)
        while len(ts) > 1:
            if len(ts) >= 3:
                a, b, c = ts[:3]; e(f"v_or3_b32 v{a}, v{a}, v{b}, v{c}"); ts = ts[3:] + [a]
            else:
                a, b = ts; e(f"v_or_b32 v{a}, v{a}, v{b}"); ts = [a]
        e(f"v_and_b32 v{ts[0]}, 0xff, v{ts[0]}")
        e(f"v_cmp_ne_u32 vcc, 0, v{ts[0]}")
    def load_epoch():
        e("s_load_dword s50, s[38:39], 0")
    def make_tag(vt):
        e("s_add_u32 s9, s50, 0x5b"); e("s_and_b32 s9, s9, 0xff"); e(f"v_mov_b32 v{vt}, s9")

    stamp(0)
    e("s_load_dwordx16 s[16:31], s[0:1], 0")
    e("s_load_dwordx8 s[32:39], s[0:1], 64")
    e("s_cmp_ge_u32 s2, 256")
    e("s_cbranch_scc1 L_end")
    e("v_lshrrev_b32 v2, 6, v0")
    e("v_and_b32 v1, 63, v0")
    e("s_and_b32 s5, s2, 7")
    e("s_lshr_b32 s6, s2, 3")
    e("v_readfirstlane_b32 s4, v2")
    e("s_lshl_b32 s8, s5, 5"); e("s_add_u32 s8, s8, s6")
    e("s_mov_b32 s13, 0x05040100"); e("s_mov_b32 s14, 0x07060302")
    e("s_mov_b32 s12, 0xffffff00"); e("s_mov_b32 s15, 0xffff0000")
    e("s_cmp_ge_u32 s4, 4")
    e("s_cbranch_scc1 L_A")
    e("s_mul_i32 s7, s5, 28"); e("s_add_u32 s7, s7, s6")
    e("v_lshrrev_b32 v2, 3, v1"); e("v_min_u32 v2, 6, v2"); e("v_and_b32 v3, 7, v1")
    e("s_lshr_b32 s42, s6, 3"); e("s_lshl_b32 s42, s42, 1"); e("s_add_u32 s42, s42, s4")
    e("s_and_b32 s43, s7, 7")
    e("s_and_b32 s44, s6, 7"); e("s_lshl_b32 s45, s5, 3"); e("s_add_u32 s44, s44, s45")
    e("s_lshr_b32 s45, s7, 3")
    e("s_movk_i32 s46, 3584")
    e("s_cmp_lt_u32 s4, 2")
    e("s_cselect_b32 s42, s42, s43")
    e("s_cselect_b32 s44, s44, s45")
    e("s_cselect_b32 s46, 8192, s46")
    e("s_cselect_b32 s3, 0, s6")
    e("s_mul_i32 s42, s42, 56")
    e("s_mul_i32 s47, s42, s46"); e("s_lshl_b32 s44, s44, 7"); e("s_add_u32 s47, s47, s44")
    e("s_lshl_b32 s43, s46, 3")
    e("v_mul_u32_u24 v4, s43, v2"); e("v_lshl_add_u32 v4, v3, 4, v4")
    e("s_lshl_b32 s42, s42, 1")
    e("v_lshl_add_u32 v5, v2, 4, s42")
    e("v_min_u32 v6, 55, v1"); e("v_lshlrev_b32 v6, 4, v6")
    e("s_cmp_eq_u32 s4, 3")
    e("s_waitcnt lgkmcnt(0)")
    e("s_cselect_b32 s40, s30, s28"); e("s_cselect_b32 s41, s31, s29")
    e("s_cmp_lt_u32 s4, 2")
    e("s_cselect_b32 s40, s22, s40"); e("s_cselect_b32 s41, s23, s41")
    e("s_add_u32 s40, s40, s47"); e("s_addc_u32 s41, s41, 0")
    e("s_cmp_ge_u32 s3, 28")
    e("s_cbranch_scc1 L_g_noload")
    e("global_load_dwordx4 v[8:11], v6, s[16:17]")
    e("global_load_dwordx4 v[12:15], v5, s[16:17]")
    for t in range(8):
        e(f"global_load_dwordx4 v[{16+4*t}:{19+4*t}], v4, s[40:41] nt")
        if t < 7: e("v_add_u32 v4, s46, v4")
    e("L_g_noload:")
    e("s_barrier")
    stamp(1)
    load_epoch()
    e("s_min_u32 s11, s7, 223"); e("s_lshl_b32 s11, s11, 2")
    e("s_load_dword s51, s[16:17], s11")
    e("s_cmp_ge_u32 s3, 28")
    e("s_cbranch_scc1 L_g_nocomp")
    for r in range(48, 80, 2): e(f"v_mov_b64 v[{r}:{r+1}], 0")
    e("v_cmp_gt_u32 vcc, 56, v1")
    e("s_mov_b32 s48, 0x01010101"); e("s_mov_b32 s49, 0x00010101")
    e("v_lshlrev_b32 v7, 4, v0")
    e("s_waitcnt vmcnt(9)")
    for i in range(4):
        e(f"v_lshlrev_b32 v{100+2*i}, 16, v{8+i}"); e(f"v_and_b32 v{101+2*i}, s15, v{8+i}")
    e("v_add_f32 v108, v100, v101"); e("v_add_f32 v109, v102, v103"); e("v_add_f32 v110, v104, v105"); e("v_add_f32 v111, v106, v107")
    e("v_add_f32 v108, v108, v109"); e("v_add_f32 v110, v110, v111"); e("v_add_f32 v108, v108, v110")
    e("v_cndmask_b32 v108, 0, v108, vcc")
    xred("v_add_f32", [108], [109], (1, 2, 4, 8))
    e(f"v_mul_f32 v108, {hex(f2u(1/448))}, v108")
    for i in range(8): e(f"v_sub_f32 v{100+i}, v{100+i}, v108")
    e("v_mul_f32 v110, v100, v100"); e("v_mul_f32 v111, v101, v101")
    for i in range(2, 8): e(f"v_fmac_f32 v{110+(i&1)}, v{100+i}, v{100+i}")
    e("v_add_f32 v110, v110, v111")
    e("v_cndmask_b32 v110, 0, v110, vcc")
    e("v_cvt_pk_bf16_f32 v112, v108, v108")
    e("v_and_b32 v112, s15, v112")
    e("s_waitcnt vmcnt(8)")
    xred("v_add_f32", [110], [111], (1, 2, 4, 8))
    e(f"v_mul_f32 v110, {hex(f2u(1/448))}, v110")
    e("v_cvt_pk_bf16_f32 v110, v110, v110"); e("v_and_b32 v110, s15, v110")
    e(f"v_add_f32 v110, {hex(f2u(1e-5))}, v110")
    e("v_cvt_pk_bf16_f32 v110, v110, v110"); e("v_and_b32 v110, s15, v110")
    e("v_sqrt_f32 v110, v110")
    for i in range(4):
        e(f"v_lshlrev_b32 v{100+2*i}, 16, v{12+i}"); e(f"v_and_b32 v{101+2*i}, s15, v{12+i}")
    e("v_cvt_pk_bf16_f32 v110, v110, v110"); e("v_and_b32 v110, s15, v110")
    e("v_rcp_f32 v110, v110")
    for i in range(8): e(f"v_sub_f32 v{100+i}, v{100+i}, v112")
    for i in range(4): e(f"v_cvt_pk_bf16_f32 v{12+i}, v{100+2*i}, v{101+2*i}")
    for i in range(4):
        e(f"v_lshlrev_b32 v{100+2*i}, 16, v{12+i}"); e(f"v_and_b32 v{101+2*i}, s15, v{12+i}")
    for i in range(8): e(f"v_mul_f32 v{100+i}, v{100+i}, v110")
    for i in range(4): e(f"v_cvt_pk_bf16_f32 v{12+i}, v{100+2*i}, v{101+2*i}")
    for j in range(8):
        e(f"s_lshl_b64 exec, s[48:49], {j}")
        e(f"v_mov_b64 v[{48+4*j}:{49+4*j}], v[12:13]"); e(f"v_mov_b64 v[{50+4*j}:{51+4*j}], v[14:15]")
    e("s_mov_b64 exec, -1")
    e("s_waitcnt vmcnt(0)")
    stamp(2)
    for w in range(4):
        T = 80 + 8 * (w & 1)
        for z in range(4):
            e(f"v_perm_b32 v{T+z}, v{16+8*z+4+w}, v{16+8*z+w}, s13")
        for z in range(4):
            e(f"v_perm_b32 v{T+4+z}, v{16+8*z+4+w}, v{16+8*z+w}, s14")
        e(f"v_mfma_f32_16x16x32_bf16 v[96:99], v[{48+8*w}:{51+8*w}], v[{T}:{T+3}], {'0' if w == 0 else 'v[96:99]'}")
        e(f"v_mfma_f32_16x16x32_bf16 v[96:99], v[{52+8*w}:{55+8*w}], v[{T+4}:{T+7}], v[96:99]")
    e(f"ds_write_b128 v7, v[96:99] offset:{GL}")
    e("L_g_nocomp:")
    e("s_waitcnt lgkmcnt(0)")
    make_tag(6)
    e("s_cmp_lg_u32 s4, 0")
    e("s_cbranch_scc1 L_w_notpub")
    e("v_and_b32 v2, 15, v1")
    e("v_lshrrev_b32 v3, 4, v1")
    e("v_lshrrev_b32 v4, 1, v2")
    e("v_and_b32 v5, 1, v2")
    e("v_lshl_add_u32 v7, v5, 4, v4")
    e("v_lshlrev_b32 v7, 4, v7")
    e("v_add_u32 v8, 1, v3"); e("v_cmp_eq_u32 vcc, 0, v3"); e("v_cndmask_b32 v8, v8, v3, vcc")
    e("v_lshl_add_u32 v7, v8, 10, v7")
    e("s_lshl_b32 s42, s5, 13"); e("s_lshl_b32 s43, s6, 8"); e("s_add_u32 s42, s42, s43"); e(f"s_add_u32 s42, s42, {QBOX}")
    e("v_lshl_add_u32 v9, v2, 4, s42")
    e("s_lshl_b32 s43, s7, 9"); e(f"s_add_u32 s43, s43, {FBOX - 32}")
    e("v_lshlrev_b32 v10, 6, v4"); e("v_lshl_add_u32 v10, v5, 4, v10"); e("v_lshl_add_u32 v10, v3, 5, v10"); e("v_add_u32 v10, s43, v10")
    e("v_cndmask_b32 v9, v10, v9, vcc")
    for r in range(24, 32, 2): e(f"v_mov_b64 v[{r}:{r+1}], 0")
    e("s_cmp_lt_u32 s6, 28")
    e("s_mov_b32 s42, 0xffff"); e("s_cselect_b32 s44, -1, s42"); e("s_cselect_b32 s45, s42, 0")
    e("s_barrier")
    e(f"ds_read_b128 v[16:19], v7 offset:{GL}")
    e(f"ds_read_b128 v[20:23], v7 offset:{GL+640}")
    e("s_mov_b64 exec, 0xffff")
    e(f"ds_read_b128 v[24:27], v7 offset:{GL+1024}")
    e(f"ds_read_b128 v[28:31], v7 offset:{GL+1024+640}")
    e("s_mov_b64 exec, s[44:45]")
    e("s_waitcnt lgkmcnt(2)")
    e("v_pk_add_f32 v[16:17], v[16:17], v[20:21]"); e("v_pk_add_f32 v[18:19], v[18:19], v[22:23]")
    e("s_waitcnt lgkmcnt(0)")
    e("v_pk_add_f32 v[24:25], v[24:25], v[28:29]"); e("v_pk_add_f32 v[26:27], v[26:27], v[30:31]")
    e("v_pk_add_f32 v[16:17], v[16:17], v[24:25]"); e("v_pk_add_f32 v[18:19], v[18:19], v[26:27]")
    for r in range(16, 20): e(f"v_bfi_b32 v{r}, s12, v{r}, v6")
    e("global_store_dwordx4 v9, v[16:19], s[38:39] sc1")
    e("s_mov_b64 exec, -1")
    stamp(3)
    if bp2: e("s_barrier")
    e("s_barrier")
    e("s_branch L_w_B1")
    e("L_w_notpub:")
    e("s_barrier")
    if bp2: e("s_barrier")
    e("s_cmp_eq_u32 s4, 1")
    e("s_cbranch_scc0 L_qgather")
    e("s_barrier")
    e("s_branch L_w_B1")
    e("L_qgather:")
    e("s_lshl_b32 s42, s5, 13"); e("s_lshl_b32 s43, s4, 10"); e("s_add_u32 s42, s42, s43"); e(f"s_add_u32 s42, s42, {QBOX - 2048}")
    e("s_add_u32 s40, s38, s42"); e("s_addc_u32 s41, s39, 0")
    e("s_add_u32 s42, s40, 4096"); e("s_addc_u32 s43, s41, 0")
    e("v_lshlrev_b32 v2, 4, v1")
    e("v_lshlrev_b32 v3, 3, v0")
    e(f"s_movk_i32 s10, {SPIN-1}")
    e("L_qhint:")
    for i in range(16):
        e(f"s_load_dword s{52+i}, s[40:41], {(i>>2)*2048 + (i&3)*256 + 252} glc")
    e("s_waitcnt lgkmcnt(0)")
    for i in range(16): e(f"s_xor_b32 s{52+i}, s{52+i}, s9")
    for i in range(1, 16): e(f"s_or_b32 s52, s52, s{52+i}")
    e("s_sub_u32 s10, s10, 1")
    e("s_cbranch_scc1 L_qhint_done")
    e("s_and_b32 s52, s52, 0xff")
    e("s_cbranch_scc1 L_qhint")
    e("L_qhint_done:")
    stamp(4)
    def qloads():
        e("global_load_dwordx4 v[16:19], v2, s[40:41] sc1")
        e("global_load_dwordx4 v[20:23], v2, s[40:41] offset:2048 sc1")
        e("global_load_dwordx4 v[24:27], v2, s[42:43] sc1")
        e("global_load_dwordx4 v[28:31], v2, s[42:43] offset:2048 sc1")
    qloads()
    e("s_barrier")
    e(f"s_movk_i32 s10, {SPIN-1}")
    e("L_qchk:")
    e("s_waitcnt vmcnt(0)")
    tagcheck(list(range(16, 32)), 32, 6)
    e("s_cbranch_vccz L_qok")
    e("s_sub_u32 s10, s10, 1")
    e("s_cbranch_scc1 L_qok")
    qloads()
    e("s_branch L_qchk")
    e("L_qok:")
    stamp(5)
    for r in range(16, 32): e(f"v_and_b32 v{r}, s12, v{r}")
    e("v_pk_add_f32 v[16:17], v[16:17], v[20:21]"); e("v_pk_add_f32 v[18:19], v[18:19], v[22:23]")
    e("v_pk_add_f32 v[24:25], v[24:25], v[28:29]"); e("v_pk_add_f32 v[26:27], v[26:27], v[30:31]")
    e("v_pk_add_f32 v[16:17], v[16:17], v[24:25]"); e("v_pk_add_f32 v[18:19], v[18:19], v[26:27]")
    e("v_cvt_pk_bf16_f32 v16, v16, v17"); e("v_cvt_pk_bf16_f32 v17, v18, v19")
    e(f"ds_write_b64 v3, v[16:17] offset:{QL - 1024}")
    e("s_waitcnt lgkmcnt(0)")
    e("L_w_B1:")
    e("v_min_u32 v2, 223, v0"); e("v_lshlrev_b32 v2, 2, v2")
    e("v_bfe_u32 v3, v1, 2, 3"); e("v_and_b32 v4, 3, v1")
    e("s_andn2_b32 s11, s7, 7"); e("s_lshl_b32 s11, s11, 9"); e("s_and_b32 s42, s7, 7"); e("s_lshl_b32 s42, s42, 6")
    e("s_add_u32 s11, s11, s42"); e(f"s_add_u32 s11, s11, {FBOX}")
    e("v_lshlrev_b32 v3, 9, v3"); e("v_lshl_add_u32 v3, v4, 4, v3"); e("v_add_u32 v3, s11, v3")
    e(f"s_mul_i32 s11, s7, {8*896}"); e(f"s_add_u32 s11, s11, {4*896}")
    e("s_add_u32 s40, s32, s11"); e("s_addc_u32 s41, s33, 0")
    e(f"s_mul_i32 s11, s8, {16*896}"); e(f"s_add_u32 s11, s11, {4*896}")
    e("s_add_u32 s42, s24, s11"); e("s_addc_u32 s43, s25, 0")
    e(f"s_add_u32 s44, s42, {8*896}"); e("s_addc_u32 s45, s43, 0")
    e("v_lshrrev_b32 v5, 2, v1")
    e(f"s_mul_i32 s11, s5, {32*OSTR}"); e("s_lshl_b32 s46, s6, 6"); e("s_add_u32 s11, s11, s46"); e(f"s_add_u32 s11, s11, {OBOX}")
    e(f"v_mul_u32_u24 v7, {OSTR}, v5"); e("v_lshl_add_u32 v7, v4, 4, v7"); e("v_add_u32 v7, s11, v7")
    e(f"v_add_u32 v8, {16*OSTR}, v7")
    e("s_lshr_b32 s11, s8, 4"); e("s_lshl_b32 s11, s11, 9"); e(f"s_add_u32 s11, s11, {MLBOX}")
    e("v_lshl_add_u32 v9, v5, 4, s11")
    e(f"s_mul_i32 s11, s8, {SSTR}"); e(f"s_add_u32 s11, s11, {SBOX}")
    e("v_lshl_add_u32 v10, v0, 4, s11")
    e("v_mov_b64 v[12:13], 0"); e("v_mov_b64 v[14:15], 0")
    e("s_barrier")
    stamp(6)
    e("s_cmp_ge_u32 s6, 28")
    e("s_cbranch_scc1 L_w_noffn1")
    e("global_load_dwordx4 v[16:19], v3, s[38:39] sc1")
    for r in range(8): e(f"global_load_dword v{20+r}, v2, s[40:41] offset:{(r-4)*896} nt")
    e("L_w_noffn1:")
    for r in range(16): e(f"global_load_dword v{28+r}, v2, s[{42 if r < 8 else 44}:{43 if r < 8 else 45}] offset:{(r%8-4)*896} nt")
    stamp(7)
    e("s_barrier")
    e("s_barrier")
    stamp(8)
    e("s_cmp_ge_u32 s6, 28")
    e("s_cbranch_scc1 L_w_noffn2")
    e(f"s_movk_i32 s10, {SPIN-1}")
    e("s_waitcnt vmcnt(24)")
    e("L_fchk:")
    tagcheck([16, 17, 18, 19], 44, 6)
    e("s_cbranch_vccz L_fok")
    e("s_sub_u32 s10, s10, 1")
    e("s_cbranch_scc1 L_fok")
    e("global_load_dwordx4 v[16:19], v3, s[38:39] sc1")
    e("s_waitcnt vmcnt(0)")
    e("s_branch L_fchk")
    e("L_fok:")
    for r in range(16, 20): e(f"v_and_b32 v{r}, s12, v{r}")
    xred("v_add_f32", [16, 17, 18, 19], [44, 45, 46, 47], (4, 8), p32=False)
    e("v_cvt_pk_bf16_f32 v16, v16, v17"); e("v_cvt_pk_bf16_f32 v18, v18, v19")
    e("v_and_b32 v17, s15, v16"); e("v_lshlrev_b32 v16, 16, v16"); e("v_and_b32 v19, s15, v18"); e("v_lshlrev_b32 v18, 16, v18")
    for r in range(4): e(f"v_max_f32 v{44+r}, 0, v{16+r}")
    for r in range(4): e(f"v_mul_f32_dpp v{44+r}, v{16+r}, v{44+r} quad_perm:[2,3,2,3] {DPPM}")
    e("v_cvt_pk_bf16_f32 v16, v44, v45"); e("v_cvt_pk_bf16_f32 v17, v46, v47")
    e("s_waitcnt vmcnt(16)")
    for z in range(4):
        e(f"v_perm_b32 v{44+z}, v{21+2*z}, v{20+2*z}, s13"); e(f"v_perm_b32 v{48+z}, v{21+2*z}, v{20+2*z}, s14")
    for z in range(4):
        k = z >> 1
        e(f"v_dot2c_f32_bf16_dpp v14, v{16+(z&1)}, v{44+z} quad_perm:[{k},{k},{k},{k}] {DPPM}")
        e(f"v_dot2c_f32_bf16_dpp v15, v{16+(z&1)}, v{48+z} quad_perm:[{k},{k},{k},{k}] {DPPM}")
    e("L_w_noffn2:")
    stamp(9)
    def x2loads():
        e("global_load_dwordx4 v[16:19], v7, s[38:39] sc1")
        e("global_load_dwordx4 v[20:23], v8, s[38:39] sc1")
        e("global_load_dwordx2 v[24:25], v9, s[38:39] sc1")
        e("global_load_dwordx2 v[26:27], v9, s[38:39] offset:256 sc1")
    x2loads()
    e(f"s_movk_i32 s10, {SPIN-1}")
    e("s_waitcnt vmcnt(4)")
    stamp(10)
    for z in range(8):
        e(f"v_perm_b32 v{44+z}, v{29+2*z}, v{28+2*z}, s13"); e(f"v_perm_b32 v{52+z}, v{29+2*z}, v{28+2*z}, s14")
    e("L_ochk:")
    e("s_waitcnt vmcnt(0)")
    tagcheck(list(range(16, 28)), 60, 6)
    e("s_cbranch_vccz L_ook")
    e("s_sub_u32 s10, s10, 1")
    e("s_cbranch_scc1 L_ook")
    x2loads()
    e("s_branch L_ochk")
    e("L_ook:")
    stamp(11)
    for r in range(24, 28): e(f"v_and_b32 v{r}, s12, v{r}")
    e("v_max_f32 v60, v24, v26")
    for r in range(16, 24): e(f"v_and_b32 v{r}, s12, v{r}")
    xred("v_max_f32", [60], [61], (4, 8))
    e("v_sub_f32 v24, v24, v60"); e("v_sub_f32 v26, v26, v60")
    e(f"v_mul_f32 v24, {hex(f2u(1.4426950408889634/16))}, v24"); e(f"v_mul_f32 v26, {hex(f2u(1.4426950408889634/16))}, v26")
    e("v_exp_f32 v24, v24"); e("v_exp_f32 v26, v26")
    e("v_mul_f32 v60, v24, v25")
    for r in range(4): e(f"v_mul_f32 v{16+r}, v24, v{16+r}")
    e("v_fmac_f32 v60, v26, v27")
    for r in range(4): e(f"v_fmac_f32 v{16+r}, v26, v{20+r}")
    xred("v_add_f32", [60, 16, 17, 18, 19], [61, 20, 21, 22, 23], (4, 8))
    e("v_rcp_f32 v60, v60")
    for r in range(4): e(f"v_mul_f32 v{16+r}, v60, v{16+r}")
    e("v_cvt_pk_bf16_f32 v16, v16, v17"); e("v_cvt_pk_bf16_f32 v17, v18, v19")
    for z in range(8):
        k = z >> 1
        e(f"v_dot2c_f32_bf16_dpp v12, v{16+(z&1)}, v{44+z} quad_perm:[{k},{k},{k},{k}] {DPPM}")
        e(f"v_dot2c_f32_bf16_dpp v13, v{16+(z&1)}, v{52+z} quad_perm:[{k},{k},{k},{k}] {DPPM}")
    e("v_cmp_gt_u32 vcc, 224, v0")
    for r in range(12, 16): e(f"v_bfi_b32 v{r}, s12, v{r}, v6")
    e("s_mov_b64 exec, vcc")
    e("global_store_dwordx4 v10, v[12:15], s[38:39] sc1")
    e("s_mov_b64 exec, -1")
    stamp(12)
    if stamps:
        e("s_cmp_eq_u32 s4, 2")
        e("s_cbranch_scc0 L_nodump2")
        dump_stamps([(4, 4), (5, 5)])
        e("L_nodump2:")
    e("s_cmp_lg_u32 s4, 0")
    e("s_cbranch_scc1 L_end")
    e("s_cmp_ge_u32 s6, 28")
    e("s_cbranch_scc1 L_fin_skip")
    e("s_lshl_b32 s11, s7, 4"); e(f"s_add_u32 s11, s11, {SBOX}")
    e(f"v_mul_u32_u24 v2, {SSTR}, v1"); e("v_add_u32 v2, s11, v2")
    for k in range(1, 4): e(f"v_add_u32 v{2+k}, {64*k*SSTR}, v2")
    e(f"s_movk_i32 s10, {SPIN-1}")
    e("L_schk:")
    for k in range(4): e(f"global_load_dwordx4 v[{16+4*k}:{19+4*k}], v{2+k}, s[38:39] sc1")
    e("s_waitcnt vmcnt(0)")
    tagcheck(list(range(16, 32)), 32, 6)
    e("s_cbranch_vccz L_sok")
    e("s_sub_u32 s10, s10, 1")
    e("s_cbranch_scc0 L_schk")
    e("L_sok:")
    stamp(13)
    for r in range(16, 32): e(f"v_and_b32 v{r}, s12, v{r}")
    e("v_pk_add_f32 v[16:17], v[16:17], v[20:21]"); e("v_pk_add_f32 v[18:19], v[18:19], v[22:23]")
    e("v_pk_add_f32 v[24:25], v[24:25], v[28:29]"); e("v_pk_add_f32 v[26:27], v[26:27], v[30:31]")
    e("v_pk_add_f32 v[16:17], v[16:17], v[24:25]"); e("v_pk_add_f32 v[18:19], v[18:19], v[26:27]")
    xred("v_add_f32", [16, 17, 18, 19], [20, 21, 22, 23], (1, 2, 4, 8))
    e("v_cvt_pk_bf16_f32 v16, v16, v17"); e("v_cvt_pk_bf16_f32 v18, v18, v19")
    e("v_and_b32 v19, s15, v18"); e("v_lshlrev_b32 v18, 16, v18")
    e(f"v_mul_f32 v20, {hex(f2u(-1.4426950408889634))}, v18"); e(f"v_mul_f32 v21, {hex(f2u(-1.4426950408889634))}, v19")
    e("v_exp_f32 v20, v20"); e("v_exp_f32 v21, v21")
    e("v_and_b32 v17, s15, v16"); e("v_lshlrev_b32 v16, 16, v16")
    e("v_add_f32 v20, 1.0, v20"); e("v_add_f32 v21, 1.0, v21")
    e("v_rcp_f32 v20, v20"); e("v_rcp_f32 v21, v21")
    e("s_lshl_b32 s42, s51, 16"); e("s_and_b32 s43, s51, s15")
    e("v_mul_f32 v18, v18, v20"); e("v_mul_f32 v19, v19, v21")
    e("v_cvt_pk_bf16_f32 v18, v18, v19")
    e("v_and_b32 v19, s15, v18"); e("v_lshlrev_b32 v18, 16, v18")
    e("v_mul_f32 v16, v16, v18"); e("v_mul_f32 v17, v17, v19")
    e("v_cvt_pk_bf16_f32 v16, v16, v17")
    e("v_and_b32 v17, s15, v16"); e("v_lshlrev_b32 v16, 16, v16")
    e("v_add_f32 v16, s42, v16"); e("v_add_f32 v17, s43, v17")
    e("v_cvt_pk_bf16_f32 v16, v16, v17")
    e("s_lshl_b32 s11, s7, 2"); e("v_mov_b32 v2, s11")
    e("s_mov_b64 exec, 1")
    e("global_store_dword v2, v16, s[34:35]")
    e("s_cmp_lg_u32 s2, 0")
    e("s_cbranch_scc1 L_fin_skip")
    e("global_store_dword v2, v6, s[38:39]")
    e("L_fin_skip:")
    if stamps:
        e("s_cmp_ge_u32 s6, 28"); e("s_cbranch_scc0 L_st13"); stamp(13); e("L_st13:")
        stamp(4)
        dump_stamps([(0, 0), (1, 1), (2, 2), (3, 3), (6, 6), (7, 7), (8, 8), (9, 9), (10, 10), (11, 11), (12, 12), (13, 13), (4, 14)])
    e("s_endpgm")

    e("L_A:")
    e("s_lshl_b32 s11, s5, 25"); e("s_lshl_b32 s42, s6, 16"); e("s_add_u32 s11, s11, s42")
    e("s_lshl_b32 s42, s4, 13"); e("s_add_u32 s11, s11, s42"); e(f"s_add_u32 s11, s11, {61440*512 - 4*8192}")
    e("v_and_b32 v2, 15, v1"); e("v_lshrrev_b32 v3, 4, v1")
    e("v_lshlrev_b32 v4, 9, v2"); e("v_lshl_add_u32 v4, v3, 4, v4")
    e("v_lshlrev_b32 v5, 11, v3"); e("v_lshl_add_u32 v5, v2, 4, v5")
    e("s_waitcnt lgkmcnt(0)")
    e("s_add_u32 s40, s18, s11"); e("s_addc_u32 s41, s19, 0")
    e("s_add_u32 s42, s20, s11"); e("s_addc_u32 s43, s21, 0")
    e("s_barrier")
    KR, VR, QR = 16, 48, 80
    def kload(i): e(f"global_load_dwordx4 v[{KR+4*i}:{KR+4*i+3}], v4, s[40:41] offset:{64*i} nt")
    for i in range(k_first): kload(i)
    load_epoch()
    e("v_bfe_u32 v7, v1, 3, 1")
    e("v_lshlrev_b32 v8, 9, v7"); e("v_lshl_add_u32 v8, v3, 4, v8")
    e("v_lshlrev_b32 v9, 5, v7")
    e("s_lshl_b32 s11, s4, 2"); e("v_add_u32 v10, s11, v9")
    e("v_lshrrev_b32 v11, 1, v3"); e("v_lshlrev_b32 v11, 6, v11"); e("v_lshl_add_u32 v11, v2, 1, v11"); e("v_and_b32 v12, 1, v3"); e("v_add_u32 v11, v11, v12")
    e("s_lshl_b32 s11, s4, 11"); e("v_lshl_add_u32 v11, v11, 4, s11")
    e("s_mov_b32 s48, 0x01010101"); e("s_mov_b32 s49, 0x01010101")
    e("s_barrier")
    if bp2: e("s_barrier")
    for i in range(k_first, k_first + k_second): kload(i)
    e("s_barrier")
    for i in range(k_first + k_second, 8): kload(i)
    for hf in range(2):
        for i in range(4):
            r = VR + 16*hf + 4*i
            e(f"global_load_dwordx4 v[{r}:{r+3}], v5, s[42:43] offset:{512*i + 256*hf} nt")
    stamp(1)
    e("s_waitcnt lgkmcnt(0)")
    make_tag(6)
    e("s_barrier")
    for i in range(8): e(f"ds_read_b128 v[{QR+4*i}:{QR+4*i+3}], v8 offset:{QL + 64*i}")
    e("s_waitcnt vmcnt(8)")
    for i in range(8):
        e(f"s_waitcnt lgkmcnt({7-i})")
        e(f"v_mfma_f32_16x16x32_bf16 v[112:115], v[{KR+4*i}:{KR+4*i+3}], v[{QR+4*i}:{QR+4*i+3}], {'0' if i == 0 else 'v[112:115]'}")
    for r in range(QR, QR+16, 2): e(f"v_mov_b64 v[{r}:{r+1}], 0")
    e("v_cvt_pk_bf16_f32 v112, v112, v113"); e("v_cvt_pk_bf16_f32 v114, v114, v115")
    e("v_and_b32 v113, s15, v112"); e("v_lshlrev_b32 v112, 16, v112"); e("v_and_b32 v115, s15, v114"); e("v_lshlrev_b32 v114, 16, v114")
    e("v_max_f32 v116, v112, v113"); e("v_max3_f32 v116, v114, v115, v116")
    xred("v_max_f32", [116], [117], ())
    e(f"ds_write_b32 v10, v116 offset:{MX - 16}")
    e("s_waitcnt lgkmcnt(0)")
    stamp(2)
    e("s_barrier")
    e(f"ds_read_b128 v[96:99], v9 offset:{MX}"); e(f"ds_read_b128 v[100:103], v9 offset:{MX+16}")
    e(f"s_mov_b32 s11, {hex(f2u(1.4426950408889634/16))}")
    e("s_waitcnt lgkmcnt(0)")
    e("v_max3_f32 v96, v96, v97, v98"); e("v_max3_f32 v100, v100, v101, v102"); e("v_max_f32 v99, v99, v103"); e("v_max3_f32 v116, v96, v100, v99")
    for r in range(4): e(f"v_sub_f32 v{112+r}, v{112+r}, v116")
    for r in range(4): e(f"v_mul_f32 v{112+r}, s11, v{112+r}")
    for r in range(4): e(f"v_exp_f32 v{112+r}, v{112+r}")
    e("v_add_f32 v117, v112, v113"); e("v_add_f32 v118, v114, v115")
    e("v_cvt_pk_bf16_f32 v112, v112, v113"); e("v_cvt_pk_bf16_f32 v113, v114, v115")
    e("v_add_f32 v117, v117, v118")
    for j in range(8):
        e(f"s_lshl_b64 exec, s[48:49], {j}")
        e(f"v_mov_b64 v[{QR+2*j}:{QR+2*j+1}], v[112:113]")
    e("s_mov_b64 exec, -1")
    xred("v_add_f32", [117], [118], ())
    e(f"ds_write_b32 v10, v117 offset:{LS - 16}")
    for hf in range(2):
        e(f"s_waitcnt vmcnt({4 - 4*hf})")
        if hf == 1: stamp(3)
        b = VR + 16*hf
        for w in range(4):
            T = KR + 16*hf + 4*w
            e(f"v_perm_b32 v{T}, v{b+4+w}, v{b+w}, s13"); e(f"v_perm_b32 v{T+1}, v{b+12+w}, v{b+8+w}, s13")
            e(f"v_perm_b32 v{T+2}, v{b+4+w}, v{b+w}, s14"); e(f"v_perm_b32 v{T+3}, v{b+12+w}, v{b+8+w}, s14")
            if w > 0:
                Tp = T - 4
                e(f"v_mfma_f32_16x16x32_bf16 v[{104+4*hf}:{107+4*hf}], v[{QR+4*(w-1)}:{QR+4*(w-1)+3}], v[{Tp}:{Tp+3}], {'0' if w == 1 else f'v[{104+4*hf}:{107+4*hf}]'}")
        e(f"v_mfma_f32_16x16x32_bf16 v[{104+4*hf}:{107+4*hf}], v[{QR+12}:{QR+15}], v[{T}:{T+3}], v[{104+4*hf}:{107+4*hf}]")
        if hf == 1:
            e(f"ds_write_b128 v11, v[104:107] offset:{OL - 4*2048}")
    e(f"ds_write_b128 v11, v[108:111] offset:{OL - 4*2048 + 512}")
    e("v_lshlrev_b32 v2, 4, v0")
    e(f"s_mul_i32 s11, s8, {OSTR}"); e(f"s_add_u32 s11, s11, {OBOX - 4096}")
    e("v_add_u32 v3, s11, v2")
    e("s_waitcnt lgkmcnt(0)")
    e("s_barrier")
    if stamps:
        e("s_cmp_eq_u32 s4, 11"); e("s_cbranch_scc0 L_nodumpA")
        dump_stamps([(3, 15)])
        e("L_nodumpA:")
    e("s_cmp_ge_u32 s4, 6")
    e("s_cbranch_scc1 L_end")
    for w in range(8): e(f"ds_read_b128 v[{16+4*w}:{19+4*w}], v2 offset:{OL - 4096 + 2048*w}")
    e(f"ds_read_b128 v[48:51], v9 offset:{LS}"); e(f"ds_read_b128 v[52:55], v9 offset:{LS+16}")
    e("s_lshl_b32 s11, s5, 1"); e("s_add_u32 s11, s11, s4"); e("s_lshl_b32 s11, s11, 9"); e("s_lshl_b32 s44, s6, 4"); e("s_add_u32 s11, s11, s44")
    e(f"s_add_u32 s11, s11, {MLBOX - 4*512}"); e("v_mov_b32 v4, s11")
    e("s_lshl_b32 s11, s4, 3"); e("s_sub_u32 s11, s11, 32"); e("s_lshl_b64 s[44:45], 1, s11")
    for w in range(0, 8, 2):
        e(f"s_waitcnt lgkmcnt({8-w})")
        e(f"v_pk_add_f32 v[{16+4*w}:{17+4*w}], v[{16+4*w}:{17+4*w}], v[{20+4*w}:{21+4*w}]")
        e(f"v_pk_add_f32 v[{18+4*w}:{19+4*w}], v[{18+4*w}:{19+4*w}], v[{22+4*w}:{23+4*w}]")
        if w in (2, 6):
            b = 16 + 4*(w-2)
            e(f"v_pk_add_f32 v[{b}:{b+1}], v[{b}:{b+1}], v[{b+8}:{b+9}]"); e(f"v_pk_add_f32 v[{b+2}:{b+3}], v[{b+2}:{b+3}], v[{b+10}:{b+11}]")
    e("v_pk_add_f32 v[16:17], v[16:17], v[32:33]"); e("v_pk_add_f32 v[18:19], v[18:19], v[34:35]")
    for r in range(16, 20): e(f"v_bfi_b32 v{r}, s12, v{r}, v6")
    e("global_store_dwordx4 v3, v[16:19], s[38:39] sc1")
    e("s_waitcnt lgkmcnt(0)")
    e("v_pk_add_f32 v[48:49], v[48:49], v[50:51]"); e("v_pk_add_f32 v[52:53], v[52:53], v[54:55]")
    e("v_pk_add_f32 v[48:49], v[48:49], v[52:53]"); e("v_add_f32 v49, v48, v49")
    e("v_bfi_b32 v48, s12, v116, v6"); e("v_bfi_b32 v49, s12, v49, v6")
    e("s_mov_b64 exec, s[44:45]")
    e("global_store_dwordx2 v4, v[48:49], s[38:39] sc1")
    e("L_end:")
    e("s_endpgm")
    return finish(L, 256, 768, LDSZ, 120)

if __name__ == "__main__":
    open("k1.s", "w").write(gen())
    open("k1s.s", "w").write(gen(stamps=True))
```
